```python
import torch

def _softmax(x, axis=-1):
    return torch.softmax(x, dim=axis)

def _gelu(x):
    return torch.nn.functional.gelu(x, approximate='tanh')

def _silu(x):
    return torch.nn.functional.silu(x)

def _sigmoid(x):
    return torch.sigmoid(x)

def _layernorm(x, axis=-1, eps=1e-05):
    m = x.mean(dim=axis, keepdim=True)
    v = x.var(dim=axis, keepdim=True, unbiased=False)
    return (x - m) / torch.sqrt(v + eps)

def _scatter_add(tgt, idx, src, axis=0):
    return tgt.clone().index_add_(axis, idx, src)

def _segment_sum(src, seg, n):
    out = torch.zeros((n,) + src.shape[1:], dtype=src.dtype)
    return out.index_add_(0, seg, src)

def _pad(x, pw):
    flat = tuple((v for pair in reversed(pw) for v in pair))
    return torch.nn.functional.pad(x, flat)
kernel_name = 'interleave_layers__spectral_fnet__mixer_gmlp__prompt'

def setup_inputs():

    _w = lambda a: (lambda t: t.to(torch.bfloat16) if t.is_floating_point() else t)(torch.as_tensor(a))

    def _A_setup():
        B, S, D = (1, 2048, 512)
        ns = torch.arange(S)[:, None] * torch.arange(S)[None, :]
        nd = torch.arange(D)[:, None] * torch.arange(D)[None, :]
        Ws_re = torch.cos(-2.0 * torch.pi * ns / S).to(float)
        Ws_im = torch.sin(-2.0 * torch.pi * ns / S).to(float)
        Wd_re = torch.cos(-2.0 * torch.pi * nd / D).to(float)
        Wd_im = torch.sin(-2.0 * torch.pi * nd / D).to(float)
        return {'x': _w((lambda *s: torch.randn(*s, dtype=torch.bfloat16) * 0.05)(B, S, D)), 'dft_seq_re': _w(Ws_re), 'dft_seq_im': _w(Ws_im), 'dft_hid_re': _w(Wd_re), 'dft_hid_im': _w(Wd_im)}
    _A_in = _A_setup()

    def _B_setup():
        B, S, D, F = (1, 2048, 512, 1792)
        Fh = F // 2
        return {'x': _w((lambda *s: torch.randn(*s, dtype=torch.bfloat16) * 0.05)(B, S, D)), 'w_in': _w((lambda *s: torch.randn(*s, dtype=torch.bfloat16) * 1.6)(D, 2 * Fh)), 'w_sp': _w(0.01 * (lambda *s: torch.randn(*s, dtype=torch.bfloat16) * 1.6)(S, S)), 'b_sp': _w(1.0 + 0.01 * (lambda *s: torch.randn(*s, dtype=torch.bfloat16) * 1.6)(S)), 'w_out': _w((lambda *s: torch.randn(*s, dtype=torch.bfloat16) * 1.6)(Fh, D))}
    _B_in = _B_setup()
    return {'A_x': _A_in['x'], 'A_dft_seq_re': _A_in['dft_seq_re'], 'A_dft_seq_im': _A_in['dft_seq_im'], 'A_dft_hid_re': _A_in['dft_hid_re'], 'A_dft_hid_im': _A_in['dft_hid_im'], 'B_x': _B_in['x'], 'B_w_in': _B_in['w_in'], 'B_w_sp': _B_in['w_sp'], 'B_b_sp': _B_in['b_sp'], 'B_w_out': _B_in['w_out']}

def reference(A_x, A_dft_seq_re, A_dft_seq_im, A_dft_hid_re, A_dft_hid_im, B_x, B_w_in, B_w_sp, B_b_sp, B_w_out):

    def _A_ref(x, dft_seq_re, dft_seq_im, dft_hid_re, dft_hid_im):
        a = torch.einsum('bsd,ed->bse', x, dft_hid_re)
        b = torch.einsum('bsd,ed->bse', x, dft_hid_im)
        y = torch.einsum('ts,bse->bte', dft_seq_re, a) - torch.einsum('ts,bse->bte', dft_seq_im, b)
        return y

    def _B_ref(x, w_in, w_sp, b_sp, w_out):
        B, S, D = x.shape
        F = w_in.shape[-1]
        Fh = F // 2
        z = _gelu(torch.einsum('bsd,df->bsf', x, w_in))
        z1 = z[..., :Fh].clone()
        z2 = _layernorm(z[..., Fh:], axis=-1)
        g = torch.einsum('ts,bsf->btf', w_sp, z2) + b_sp[None, :, None]
        return torch.einsum('bsf,fd->bsd', z1 * g, w_out)
    x = A_x
    x = x + _A_ref(_layernorm(x, axis=-1), A_dft_seq_re, A_dft_seq_im, A_dft_hid_re, A_dft_hid_im)
    x = x + _B_ref(_layernorm(x, axis=-1), B_w_in, B_w_sp, B_b_sp, B_w_out)
    x = x + _A_ref(_layernorm(x, axis=-1), A_dft_seq_re, A_dft_seq_im, A_dft_hid_re, A_dft_hid_im)
    x = x + _B_ref(_layernorm(x, axis=-1), B_w_in, B_w_sp, B_b_sp, B_w_out)
    return x
```

```python
NAME = "interleave_layers__spectral_fnet__mixer_gmlp__prompt"

KA = dict(x=0, seq_re=8, seq_im=16, hid_re=24, hid_im=32, bx=40, w_in=48, w_sp=56, b_sp=64,
          w_out=72, out=80, dbg=88, ws=96)
KSIZE = dict(x=2097152, seq_re=8388608, seq_im=8388608, hid_re=524288, hid_im=524288, bx=2097152,
             w_in=1835008, w_sp=8388608, b_sp=4096, w_out=917504, out=2097152, dbg=256, ws=268435456)


class Kernel:
    def __init__(self, label, grid, block, lds=0, vgpr=256, agpr=0, sgpr=102):
        assert label.endswith("_kernel")
        self.label, self.grid, self.block, self.lds = label, grid, block, lds
        self.vgpr, self.agpr, self.sgpr = vgpr, agpr, sgpr
        self.lines = []
        self.nlab = 0

    def __call__(self, s):
        for ln in s.strip("\n").split("\n"):
            ln = ln.strip()
            if ln:
                self.lines.append(ln if ln.endswith(":") else "    " + ln)

    def lab(self, base):
        self.nlab += 1
        return f"L_{self.label[:-7]}_{base}_{self.nlab}"

    def text(self):
        return (f".p2align 8\n.globl {self.label}\n.type {self.label},@function\n{self.label}:\n"
                + "\n".join(self.lines) + "\n")

    def desc(self):
        acc = (self.vgpr + 3) // 4 * 4
        nfv = acc + self.agpr if self.agpr else self.vgpr
        return (f".p2align 6\n.amdhsa_kernel {self.label}\n"
                f"  .amdhsa_next_free_vgpr {nfv}\n  .amdhsa_next_free_sgpr {self.sgpr}\n"
                f"  .amdhsa_accum_offset {acc}\n  .amdhsa_group_segment_fixed_size 0\n"
                f"  .amdhsa_kernarg_size 104\n  .amdhsa_user_sgpr_count 2\n"
                f"  .amdhsa_user_sgpr_kernarg_segment_ptr 1\n  .amdhsa_system_sgpr_workgroup_id_x 1\n"
                f"  .amdhsa_float_denorm_mode_32 3\n"
                f".end_amdhsa_kernel\n")

    def launch_line(self):
        g, b = self.grid, self.block
        return f"; @launch kernel={self.label} grid=({g},1,1) block=({b},1,1) lds={self.lds}"


def build(launches, header=""):
    seen, uniq = set(), []
    for k in launches:
        if k.label not in seen:
            seen.add(k.label)
            uniq.append(k)
    out = header
    out += "\n".join(k.launch_line() for k in launches) + "\n"
    out += '.amdgcn_target "amdgcn-amd-amdhsa--gfx950"\n.text\n'
    out += "".join(k.text() for k in uniq)
    out += '.section .rodata,"a"\n'
    out += "".join(k.desc() for k in uniq)
    return out


def srd(k, dst, buf, off=0, size=None, tmp=None):
    if size is None:
        size = KSIZE[buf] - off
    if off:
        k(f"s_add_u32 s{dst}, s{tmp}, {off:#x}\ns_addc_u32 s{dst+1}, s{tmp+1}, 0")
    else:
        k(f"s_mov_b32 s{dst}, s{tmp}\ns_mov_b32 s{dst+1}, s{tmp+1}")
    k(f"s_mov_b32 s{dst+2}, {size:#x}\ns_mov_b32 s{dst+3}, 0x20000")
```

```python
import sys
from asmlib import *

S, D, F, FH = 2048, 512, 1792, 896
MB = 1 << 20
WS = dict(h=0, aT=2*MB, bT=4*MB, x1=6*MB, x2=8*MB, x3=10*MB, z=12*MB, z2T=20*MB, u=24*MB, winT=28*MB, woutT=30*MB)
WSZ = dict(h=S*D*2, aT=S*D*2, bT=S*D*2, x1=S*D*2, x2=S*D*2, x3=S*D*2, z=S*F*2, z2T=S*FH*2, u=S*FH*2,
           winT=D*F*2, woutT=D*FH*2)


def bufs(k, names, base=8):
    regs = {}
    for i, n in enumerate(names):
        src = n if n in KA else "ws"
        k(f"s_load_dwordx2 s[{60+2*i}:{61+2*i}], s[0:1], {KA[src]}")
    k("s_waitcnt lgkmcnt(0)")
    for i, n in enumerate(names):
        d = base + 4*i
        if n in KA:
            srd(k, d, n, tmp=60+2*i)
        else:
            srd(k, d, "ws", off=WS[n], size=WSZ[n], tmp=60+2*i)
        regs[n] = f"s[{d}:{d+3}]"
    return regs


def guard(k, n):
    end = k.lab("end")
    k(f"s_cmp_ge_u32 s2, {n}\ns_cbranch_scc1 {end}")
    return end


def wave_sum(k, v, t, a):
    for x in (1, 2, 4, 8, 16, 32):
        k(f"v_xor_b32 v{a}, {x}, v0\nv_lshlrev_b32 v{a}, 2, v{a}\nds_bpermute_b32 v{t}, v{a}, v{v}\n"
          f"s_waitcnt lgkmcnt(0)\nv_add_f32 v{v}, v{v}, v{t}")


def ln_kernel(label, src, ld, coff, n, dst, transposed):
    k = Kernel(label, S, 64, vgpr=64)
    end = guard(k, S)
    r = bufs(k, [src, dst])
    cnt = n // 64
    k(f"s_mul_i32 s3, s2, {ld*2}\ns_add_u32 s3, s3, {coff*2}\nv_lshlrev_b32 v1, 1, v0\nv_add_u32 v1, s3, v1")
    for i in range(cnt):
        k(f"buffer_load_ushort v{10+i}, v1, {r[src]}, 0 offen offset:{128*i}")
    k("s_waitcnt vmcnt(0)\nv_mov_b32 v2, 0")
    for i in range(cnt):
        k(f"v_lshlrev_b32 v{10+i}, 16, v{10+i}\nv_add_f32 v2, v2, v{10+i}")
    wave_sum(k, 2, 3, 4)
    k(f"v_mul_f32 v2, {1.0/n!r}, v2\nv_mov_b32 v5, 0")
    for i in range(cnt):
        k(f"v_sub_f32 v{10+i}, v{10+i}, v2\nv_fmac_f32 v5, v{10+i}, v{10+i}")
    wave_sum(k, 5, 3, 4)
    k(f"v_mul_f32 v5, {1.0/n!r}, v5\nv_add_f32 v5, 1e-5, v5\nv_rsq_f32 v5, v5\ns_nop 1")
    for i in range(cnt):
        k(f"v_mul_f32 v{10+i}, v{10+i}, v5\nv_cvt_pk_bf16_f32 v{10+i}, v{10+i}, v{10+i}")
    if transposed:
        k(f"s_lshl_b32 s3, s2, 1\nv_lshlrev_b32 v1, 12, v0\nv_add_u32 v1, s3, v1")
        for i in range(cnt):
            k(f"s_mov_b32 s4, {64*i*S*2}\nbuffer_store_short v{10+i}, v1, {r[dst]}, s4 offen")
    else:
        k(f"s_mul_i32 s3, s2, {n*2}\nv_lshlrev_b32 v1, 1, v0\nv_add_u32 v1, s3, v1")
        for i in range(cnt):
            k(f"buffer_store_short v{10+i}, v1, {r[dst]}, 0 offen offset:{128*i}")
    k(f"{end}:\ns_endpgm")
    return k


def tr_kernel(label, src, rows, cols, dst):
    k = Kernel(label, rows, 64, vgpr=64)
    end = guard(k, rows)
    r = bufs(k, [src, dst])
    cnt = cols // 64
    k(f"s_mul_i32 s3, s2, {cols*2}\nv_lshlrev_b32 v1, 1, v0\nv_add_u32 v1, s3, v1")
    for i in range(cnt):
        k(f"buffer_load_ushort v{10+i}, v1, {r[src]}, 0 offen offset:{128*i}")
    k(f"s_lshl_b32 s3, s2, 1\nv_mul_u32_u24 v2, {rows*2}, v0\nv_add_u32 v2, s3, v2\ns_waitcnt vmcnt(0)")
    for i in range(cnt):
        k(f"s_mov_b32 s4, {64*i*rows*2}\nbuffer_store_short v{10+i}, v2, {r[dst]}, s4 offen")
    k(f"{end}:\ns_endpgm")
    return k


def gemm_kernel(label, pairs, M, N, K, out, ldo, epi, extra=()):
    mt, nt = M // 32, N // 32
    k = Kernel(label, mt*nt, 64, vgpr=96)
    end = guard(k, mt*nt)
    names = []
    for p in pairs:
        names += list(p)
    names += [out] + [e for e in extra if e != out and e not in names]
    r = bufs(k, names)
    k(f"s_mov_b32 s4, {(2**32 + mt - 1)//mt}\ns_mul_hi_u32 s5, s2, s4\ns_mul_i32 s6, s5, {mt}\ns_sub_u32 s4, s2, s6")
    k("s_lshl_b32 s4, s4, 5\ns_lshl_b32 s5, s5, 5")
    k("v_and_b32 v1, 31, v0\nv_lshrrev_b32 v2, 5, v0")
    k(f"v_add_u32 v3, s4, v1\nv_mul_u32_u24 v3, {K*2}, v3\nv_lshlrev_b32 v5, 4, v2\nv_add_u32 v3, v3, v5")
    k(f"v_add_u32 v4, s5, v1\nv_mul_u32_u24 v4, {K*2}, v4\nv_add_u32 v4, v4, v5")
    for i in range(32):
        k(f"v_mov_b32 v{16+i}, 0")
    for pi, (A, B) in enumerate(pairs):
        lp = k.lab("k")
        acc = f"v[{16+16*pi}:{31+16*pi}]"
        k(f"s_mov_b32 s6, 0\n{lp}:")
        for j in range(4):
            k(f"buffer_load_dwordx4 v[{48+8*j}:{51+8*j}], v3, {r[A]}, s6 offen offset:{32*j}")
            k(f"buffer_load_dwordx4 v[{52+8*j}:{55+8*j}], v4, {r[B]}, s6 offen offset:{32*j}")
        for j in range(4):
            k(f"s_waitcnt vmcnt({6-2*j})")
            k(f"v_mfma_f32_32x32x16_bf16 {acc}, v[{48+8*j}:{51+8*j}], v[{52+8*j}:{55+8*j}], {acc}")
        k(f"s_add_u32 s6, s6, 128\ns_cmp_lt_u32 s6, {K*2}\ns_cbranch_scc1 {lp}")
    k("s_nop 15")
    if len(pairs) == 2:
        for i in range(16):
            k(f"v_sub_f32 v{16+i}, v{16+i}, v{32+i}")
    k("v_add_u32 v6, s5, v1\nv_lshlrev_b32 v7, 2, v2\nv_add_u32 v7, s4, v7")

    def off(reg, ld):
        k(f"v_mul_u32_u24 v{reg}, {ld}, v6\nv_add_lshl_u32 v{reg}, v{reg}, v7, 1")

    def load_aux(buf, ld):
        off(9, ld)
        for j in range(4):
            k(f"buffer_load_dwordx2 v[{48+2*j}:{49+2*j}], v9, {r[buf]}, 0 offen offset:{16*j}")
        k("s_waitcnt vmcnt(0)")
        for j in range(8):
            k(f"v_lshlrev_b32 v{64+2*j}, 16, v{48+j}\nv_and_b32 v{65+2*j}, 0xffff0000, v{48+j}")
    if epi == "res":
        load_aux(extra[0], D)
        for i in range(16):
            k(f"v_add_f32 v{16+i}, v{16+i}, v{64+i}")
    elif epi == "gelu":
        c1 = -2*0.7978845608028654*1.4426950408889634
        for i in range(16):
            x = 16+i
            k(f"v_mul_f32 v10, v{x}, v{x}\nv_mul_f32 v10, {0.044715*c1!r}, v10\nv_add_f32 v10, {c1!r}, v10\n"
              f"v_mul_f32 v10, v10, v{x}\nv_exp_f32 v10, v10\ns_nop 0\nv_add_f32 v10, 1.0, v10\nv_rcp_f32 v10, v10\ns_nop 0\n"
              f"v_mul_f32 v{x}, v{x}, v10")
    elif epi == "gate":
        k(f"v_lshlrev_b32 v10, 1, v6\nbuffer_load_ushort v11, v10, {r[extra[1]]}, 0 offen")
        load_aux(extra[0], F)
        k("v_lshlrev_b32 v11, 16, v11")
        for i in range(16):
            k(f"v_add_f32 v{16+i}, v{16+i}, v11\nv_mul_f32 v{16+i}, v{16+i}, v{64+i}")
    off(8, ldo)
    for j in range(4):
        k(f"v_cvt_pk_bf16_f32 v{48+2*j}, v{16+4*j}, v{17+4*j}\nv_cvt_pk_bf16_f32 v{49+2*j}, v{18+4*j}, v{19+4*j}")
        k(f"buffer_store_dwordx2 v[{48+2*j}:{49+2*j}], v8, {r[out]}, 0 offen offset:{16*j}")
    k(f"{end}:\ns_endpgm")
    return k


def empty_kernel(grid):
    k = Kernel("empty_kernel", grid, 256, vgpr=8)
    k("s_endpgm")
    return k


def make(nempty=0, egrid=256):
    L = [tr_kernel("trin_kernel", "w_in", D, F, "winT"), tr_kernel("trout_kernel", "w_out", FH, D, "woutT")]
    ga = gemm_kernel("ga_kernel", [("h", "hid_re")], S, D, D, "aT", S, None)
    gb = gemm_kernel("gb_kernel", [("h", "hid_im")], S, D, D, "bT", S, None)
    gz = gemm_kernel("gz_kernel", [("winT", "h")], F, S, D, "z", F, "gelu")
    lz = ln_kernel("lz_kernel", "z", F, FH, FH, "z2T", True)
    gu = gemm_kernel("gu_kernel", [("z2T", "w_sp")], FH, S, S, "u", FH, "gate", ("z", "b_sp"))
    for i, (xa, xb, xc) in enumerate([("x", "x1", "x2"), ("x2", "x3", "out")]):
        L += [ln_kernel(f"lna{i}_kernel", xa, D, 0, D, "h", False), ga, gb,
              gemm_kernel(f"gy{i}_kernel", [("aT", "seq_re"), ("bT", "seq_im")], D, S, S, xb, D, "res", (xa,)),
              ln_kernel(f"lnb{i}_kernel", xb, D, 0, D, "h", False), gz, lz, gu,
              gemm_kernel(f"go{i}_kernel", [("woutT", "u")], D, S, FH, xc, D, "res", (xb,))]
    e = empty_kernel(egrid)
    L += [e]*nempty
    return build(L)


if __name__ == "__main__":
    open("base0.s", "w").write(make(0))
    open("base50.s", "w").write(make(50))
    open("base100.s", "w").write(make(100))
    open("base100g1.s", "w").write(make(100, 1))
```

```python
import re
from asmlib import Kernel

TRANS = ("v_exp_", "v_log_", "v_rcp_", "v_rsq_", "v_sqrt_", "v_sin_", "v_cos_")
RMW = ("v_fmac_", "v_dot2c_", "v_writelane")
_reg = re.compile(r"^(-|abs\()?([vas])(?:(\d+)|\[(\d+):(\d+)\])\)?$")


def regs_of(op):
    op = op.strip()
    if op in ("vcc", "exec", "m0"):
        return {(op, 0)}
    m = _reg.match(op)
    if not m:
        return set()
    t = m.group(2)
    if m.group(3) is not None:
        return {(t, int(m.group(3)))}
    return {(t, i) for i in range(int(m.group(4)), int(m.group(5)) + 1)}


class Ins:
    __slots__ = ("text", "mn", "cls", "w", "r", "a", "c", "wide", "states", "lds")

    def __init__(self, text):
        self.text = text
        parts = text.split(None, 1)
        mn = self.mn = parts[0]
        rest = parts[1] if len(parts) > 1 else ""
        ops = [o.strip() for o in rest.split(",")] if rest else []
        mods = ""
        if ops:
            last = ops[-1].split(None, 1)
            ops[-1] = last[0]
            mods = last[1] if len(last) > 1 else ""
        R = [regs_of(o) for o in ops]
        un = lambda l: set().union(*l) if l else set()
        self.w, self.r, self.a, self.c = set(), set(), set(), set()
        self.wide = False
        self.lds = False
        self.states = 1
        if mn == "s_nop":
            self.cls = "nop"
            self.states = int(ops[0], 0) + 1
        elif mn.startswith("v_mfma"):
            self.cls = "mfma"
            self.w, self.a, self.c = R[0], R[1] | R[2], R[3]
            self.r = self.a | self.c
        elif mn.startswith("v_permlane"):
            self.cls = "perm"
            self.w = self.r = R[0] | R[1]
        elif mn.startswith("v_"):
            self.cls = "dot" if mn.startswith("v_dot") else "trans" if mn.startswith(TRANS) else "valu"
            if mn.startswith(("v_readfirstlane", "v_readlane")):
                self.cls = "rdlane"
            self.w, self.r = set(R[0]), un(R[1:])
            if mn.startswith(RMW):
                self.r |= R[0]
            if mn.startswith(("v_add_co", "v_addc_co", "v_sub_co")):
                self.w |= R[1]
        elif mn.startswith("ds_"):
            self.cls = "ds"
            if mn.startswith(("ds_read", "ds_bpermute")):
                self.w, self.r = R[0], un(R[1:])
            else:
                self.r = un(R)
        elif mn.startswith(("buffer_", "global_")):
            self.cls = "vmem"
            self.lds = "lds" in mods.split() or "_lds_" in mn
            if "load" in mn and not self.lds:
                self.w, self.r = R[0], un(R[1:])
            else:
                self.r = un(R)
                if "atomic" in mn and "sc0" in mods.split():
                    self.w = R[0]
                if ("store" in mn) and mn.endswith(("x3", "x4")):
                    self.wide = True
                    self.c = R[0] if mn.startswith("buffer") else R[1]
        else:
            self.cls = "salu"
            if ops and not mn.startswith(("s_cmp", "s_cbranch", "s_branch", "s_waitcnt", "s_barrier", "s_bitcmp", "s_sleep", "s_setprio", "s_endpgm")):
                self.w, self.r = R[0], un(R[1:])
                if "saveexec" in mn:
                    self.w = self.w | {("exec", 0)}


VALU_LIKE = ("valu", "trans", "dot", "perm", "rdlane")


def need(p, c):
    n = 0
    vw = {x for x in p.w if x[0] in "va"}
    sw = {x for x in p.w if x[0] in ("s", "vcc")}
    if p.cls == "mfma":
        if c.cls == "mfma":
            if p.w & c.a:
                n = max(n, 8)
            if p.w & c.c and p.w != c.c:
                n = max(n, 6)
            if p.w & c.w and not (p.w & c.c):
                n = max(n, 6)
        elif c.cls in VALU_LIKE or c.cls in ("ds", "vmem"):
            if p.w & (c.r | c.w):
                n = max(n, 8)
        if c.cls in VALU_LIKE and p.c & c.w:
            n = max(n, 3)
    if p.cls in VALU_LIKE:
        if c.cls == "mfma" and vw & c.r:
            n = max(n, 3 if p.cls == "dot" else 2)
        if c.cls == "perm" and vw & c.r:
            n = max(n, 2)
        if c.cls == "rdlane" and vw & c.r:
            n = max(n, 1)
        if c.cls in VALU_LIKE and "dpp" in c.mn and vw & c.r:
            n = max(n, 2)
        if p.cls == "trans" and c.cls != "trans" and vw & c.r:
            n = max(n, 1)
        if p.cls == "dot" and vw & (c.r | c.w) and not (c.mn == p.mn and c.w == p.w):
            n = max(n, 3)
        if sw and c.cls == "vmem" and sw & c.r:
            n = max(n, 5)
        if sw and c.cls in VALU_LIKE and (sw & c.r or (("vcc", 0) in sw and c.mn.startswith("v_cndmask"))):
            n = max(n, 4 if c.mn.startswith(("v_readlane", "v_writelane")) else 2)
        if sw and c.cls == "salu" and sw & c.r:
            n = max(n, 1)
        if "sdwa" in p.mn and c.cls in VALU_LIKE and vw & (c.r | c.w):
            n = max(n, 1)
    if p.cls == "salu" and ("m0", 0) in p.w and ((c.cls == "vmem" and c.lds) or "addtid" in c.mn):
        n = max(n, 1)
    if p.wide and p.c & c.w:
        n = max(n, 2)
    return n


class Emit(Kernel):
    def __init__(self, *a, **kw):
        super().__init__(*a, **kw)
        self.hist = []
        self.vm = 0
        self.lg = 0
        self.count = True

    def __call__(self, s):
        tok = None
        for ln in s.strip("\n").split("\n"):
            ln = ln.split(";")[0].strip()
            if not ln:
                continue
            if ln.endswith(":") or ln.startswith("."):
                self.lines.append(ln)
                continue
            ins = Ins(ln)
            pad, dist = 0, 0
            for p in reversed(self.hist):
                pad = max(pad, need(p, ins) - dist)
                dist += p.states
                if dist >= 12:
                    break
            if pad > 0:
                nop = Ins(f"s_nop {pad-1}")
                self.lines.append("    " + nop.text)
                self.hist.append(nop)
            self.lines.append("    " + ln)
            self.hist.append(ins)
            self.hist = self.hist[-16:]
            if ins.cls == "vmem":
                if self.count:
                    self.vm += 1
                tok = self.vm
            elif ins.cls == "ds":
                if self.count:
                    self.lg += 1
                tok = self.lg
        return tok

    def note(self, s):
        self.lines.append(f"    ; {s}")

    def wvm(self, tok):
        self(f"s_waitcnt vmcnt({min(63, self.vm - tok)})")

    def wlg(self, tok):
        self(f"s_waitcnt lgkmcnt({min(15, self.lg - tok)})")

    def wboth(self, vtok, ltok):
        self(f"s_waitcnt vmcnt({min(63, self.vm - vtok)}) lgkmcnt({min(15, self.lg - ltok)})")

    def optional(self):
        k = self

        class C:
            def __enter__(s):
                s.old = k.count
                k.count = False

            def __exit__(s, *a):
                k.count = s.old
        return C()

    def fence(self):
        self("s_nop 7")
```

```python
import sys, struct, math
from asmlib import *
from emit import Emit

KB, MB = 1024, 1 << 20
GC, LF, CSP = 0, 8192, 64*KB
WIN, WOUT, X2, ST2 = 1*MB, 3*MB, 4*MB, 6*MB
IT0, ITS = 8*MB, 16*MB
Z, X1, ST1, ZS, Z2N, U = 0, 2*MB, 4*MB, 4*MB + 512*KB, 5*MB, 9*MB
DIAG = 48*MB
WS_SIZE = 64*MB
OOB = 0x40000000
CH = 28672
FD_L, XB_L, RS = 0, 67584, 1056
T_L = 5*CH
CS_L = T_L + 15616
MISC_L = CS_L + 896
LDS_SIZE = 163840
SP_RS = 1040
X_RS = 144
T_RS, T_AS = 240, 3904
sWS, sFD, sA, sRES, sDST, sB = 4, 8, 12, 16, 20, 24
pX, pHRE, pHIM, pWIN, pWSP, pBSP, pWOUT, pOUT, pDBG, pWSP_ = 36, 42, 44, 48, 50, 52, 54, 56, 58, 60
pWS = 60
(sW, sK, sHI, sLO, sIT, sITB, sGE, sLE, sSPIN, sERR, sW7, sXCC, sSH, sONE, sCNT) = range(62, 77)
t0, t1, t2, t3, t4, t5, t6, t7 = range(78, 86)
sEX = 86
sC = 88
sTS = 96
vLANE, vL16, vN, vQ, vBIAS = 0, 1, 2, 3, 4
vA0, vA1, vA2, vA3, vA4, vA5 = 5, 6, 7, 8, 9, 10
vT0, vT1, vT2, vT3 = 12, 13, 14, 15
vDG = 255


def S(i, n=4): return f"s[{i}:{i+n-1}]"
def V(i, n=4): return f"v[{i}:{i+n-1}]"
def A(i, n=4): return f"a[{i}:{i+n-1}]"
def fl(x): return f"{struct.unpack('<I', struct.pack('<f', x))[0]:#x}"


class Gen:
    def __init__(self, diag=False, **opt):
        self.k = Emit(NAME + "_kernel", 256, 256, lds=LDS_SIZE, vgpr=256, agpr=256, sgpr=102)
        self.diag = diag
        self.nst = 0
        self.names = []
        self.o = dict(lag3=10, lagx=6)
        self.o.update(opt)

    def stamp(self, name):
        if not self.diag:
            return
        k = self.k
        k(f"s_memrealtime s[{sTS}:{sTS+1}]\ns_lshl_b32 s{sTS+2}, s{sIT}, 5\ns_add_u32 s{sTS+2}, s{sTS+2}, {self.nst}\n"
          f"s_mov_b32 s{sTS+3}, m0\ns_mov_b32 m0, s{sTS+2}\ns_waitcnt lgkmcnt(0)\nv_writelane_b32 v{vDG}, s{sTS}, m0\ns_mov_b32 m0, s{sTS+3}")
        self.names.append(name)
        self.nst += 1
        assert self.nst <= 32

    def mk_srd(self, d, p, size):
        self.k(f"s_mov_b32 s{d}, s{p}\ns_mov_b32 s{d+1}, s{p+1}\ns_mov_b32 s{d+2}, {size:#x}\ns_mov_b32 s{d+3}, 0x20000")

    def if_it(self, it):
        return self.cond(f"s_cmp_lg_u32 s{sIT}, {it}")

    def if_w0(self):
        return self.cond(f"s_cmp_lg_u32 s{sW}, 0")

    def cond(self, skip_cmp):
        g, k = self, self.k

        class C:
            def __enter__(s):
                s.lab = k.lab("skip")
                k(f"{skip_cmp}\ns_cbranch_scc1 {s.lab}")
                s.vm, s.lg, s.hist = k.vm, k.lg, list(k.hist)

            def __exit__(s, *a):
                k(f"{s.lab}:")
                k.vm, k.lg = s.vm, s.lg
                g.join_hist(s.hist)
        return C()

    def join_hist(self, other):
        k = self.k
        zero = []
        for p in other[-12:]:
            zero.append(p)
        merged, a, b = [], list(k.hist), zero
        import copy
        da = db = 0
        ia, ib = len(a)-1, len(b)-1
        items = []
        for lst in (a, b):
            d = 0
            for p in reversed(lst):
                items.append((d, p))
                d += p.states
        items.sort(key=lambda x: x[0])
        out = []
        for i, (d, p) in enumerate(items):
            q = copy.copy(p)
            nxt = items[i+1][0] if i+1 < len(items) else d+1
            q.states = nxt - d
            out.append(q)
        k.hist = list(reversed(out))

    def poll(self, vaddr, srd, soff, target, code):
        k = self.k
        lp, done = k.lab("poll"), k.lab("ok")
        with k.optional():
            k(f"s_mov_b32 s{sCNT}, s{sSPIN}\n{lp}:")
            k(f"buffer_load_dword v{vT0}, v{vaddr}, {S(srd)}, {soff} offen sc1\ns_waitcnt vmcnt(0)")
            k(f"v_cmp_gt_u32 vcc, {target}, v{vT0}\ns_cbranch_vccz {done}")
            k(f"s_sub_u32 s{sCNT}, s{sCNT}, 1\ns_cbranch_scc0 {lp}")
            k(f"s_mov_b32 s{sSPIN}, 0\ns_mov_b32 s{sERR}, {code}\n{done}:")

    def g_arrive(self):
        k = self.k
        k("s_barrier")
        with self.if_w0():
            k(f"v_lshlrev_b32 v{vT0}, 10, v{vLANE}\nv_mov_b32 v{vT1}, 1\ns_lshl_b32 s{t0}, s{sSH}, 7\ns_mov_b64 exec, 0xff")
            k(f"buffer_atomic_add v{vT1}, v{vT0}, {S(sWS)}, s{t0} offen sc1\ns_mov_b64 exec, -1")
        k(f"s_add_u32 s{sGE}, s{sGE}, 32")

    def g_wait(self, code):
        k = self.k
        with self.if_w0():
            k(f"v_and_b32 v{vT1}, 7, v{vLANE}\nv_lshlrev_b32 v{vT1}, 7, v{vT1}\ns_lshl_b32 s{t0}, s{sXCC}, 10")
            self.poll(vT1, sWS, f"s{t0}", f"s{sGE}", code)
        k("s_barrier")

    def l_arrive(self):
        k = self.k
        k(f"s_barrier\ns_add_u32 s{sLE}, s{sLE}, 1")
        with self.if_w0():
            self.lf_store(f"s{sLE}")

    def lf_store(self, val):
        k = self.k
        k(f"s_lshl_b32 s{t0}, s{sK}, 5\ns_lshl3_add_u32 s{t0}, s{sHI}, s{t0}\ns_add_u32 s{t0}, s{t0}, s{sLO}\n"
          f"s_lshl_b32 s{t0}, s{t0}, 2\ns_add_u32 s{t0}, s{t0}, {LF}\nv_mov_b32 v{vT1}, {val}\ns_mov_b64 exec, 1")
        k(f"buffer_store_dword v{vT1}, off, {S(sWS)}, s{t0}\ns_mov_b64 exec, -1")

    def l_wait(self, code):
        k = self.k
        with self.if_w0():
            k(f"v_and_b32 v{vT1}, 31, v{vLANE}\nv_lshlrev_b32 v{vT1}, 2, v{vT1}\ns_lshl_b32 s{t0}, s{sK}, 7\ns_add_u32 s{t0}, s{t0}, {LF}")
            self.poll(vT1, sWS, f"s{t0}", f"s{sLE}", code)
        k("s_barrier")

    def dma_chunk_ops(self, sbase, src_off, slot):
        ops = []
        for i in range(7):
            pre = ""
            if i % 4 == 0:
                pre = (f"s_add_u32 s{t7}, s{sbase}, {src_off + i*1024:#x}\n"
                       f"s_add_u32 m0, s{sW7}, {slot*CH + i*1024:#x}\n")
            ops.append(pre + f"buffer_load_dwordx4 v{vL16}, {S(sWS)}, s{t7} offen offset:{(i%4)*1024} sc1 lds")
        return ops

    def chunk_addr(self, slot, off):
        reg = (vL16, vA0, vA1)[slot // 2]
        return reg, (slot % 2)*CH + off

    def chunk_addr_regs(self):
        self.k(f"v_add_u32 v{vA0}, {2*CH}, v{vL16}\nv_add_u32 v{vA1}, {4*CH}, v{vL16}")

    def gemm(self, nt, steps, acc, bfrag, lds, ring, nring, hook=None, cinit=None, mid=None):
        k = self.k
        seq = [(s, t) for s in steps for t in range(nt)]
        toks = {}

        def rd(i):
            s, t = seq[i]
            reg, off = lds(s, t)
            toks[i] = k(f"ds_read_b128 {V(ring + 4*(i % nring))}, v{reg} offset:{off}")
        ahead = nring - 1
        for i in range(min(ahead, len(seq))):
            rd(i)
        for i, (s, t) in enumerate(seq):
            if t == 0 and hook:
                hook(s)
            k.wlg(toks[i])
            c = V(acc + 4*t)
            if s == 0 and cinit is not None:
                c = cinit(t)
            k(f"v_mfma_f32_16x16x32_bf16 {V(acc + 4*t)}, {V(ring + 4*(i % nring))}, {V(bfrag(s))}, {c}")
            if i + ahead < len(seq):
                rd(i + ahead)
            if mid:
                mid(i)

    def reduce_q_pair(self, s, ss):
        self.k(f"v_permlane32_swap_b32 v{s}, v{ss}\nv_add_f32 v{s}, v{s}, v{ss}\nv_mov_b32 v{ss}, v{s}\n"
               f"v_permlane16_swap_b32 v{s}, v{ss}\nv_add_f32 v{s}, v{s}, v{ss}\nv_mov_b32 v{ss}, v{s}\n"
               f"v_permlane32_swap_b32 v{s}, v{ss}")

    def finish_stats(self, s, ss, n, r, nm):
        self.k(f"v_mul_f32 v{s}, {fl(1.0/n)}, v{s}\nv_mul_f32 v{ss}, {fl(1.0/n)}, v{ss}\n"
               f"v_fma_f32 v{ss}, -v{s}, v{s}, v{ss}\nv_max_f32 v{ss}, 0, v{ss}\nv_add_f32 v{ss}, {fl(1e-5)}, v{ss}\n"
               f"v_rsq_f32 v{r}, v{ss}\nv_mul_f32 v{nm}, -v{s}, v{r}")

    def stats_from_partials(self, raw, s, ss):
        self.k(f"v_pk_add_f32 {V(raw,2)}, {V(raw,2)}, {V(raw+2,2)}\nv_pk_add_f32 {V(raw+4,2)}, {V(raw+4,2)}, {V(raw+6,2)}\n"
               f"v_add_f32 v{s}, v{raw}, v{raw+4}\nv_add_f32 v{ss}, v{raw+1}, v{raw+5}")
        self.reduce_q_pair(s, ss)

    def frag_stats(self, f0, f1):
        k = self.k
        a, b, c, d = vT0, vT1, vT2, vT3
        k(f"v_mov_b32 v{a}, 0\nv_mov_b32 v{b}, 0\nv_mov_b32 v{c}, 0\nv_mov_b32 v{d}, 0")
        for i in range(4):
            k(f"v_dot2c_f32_bf16 v{a}, s{sONE}, v{f0+i}\nv_dot2c_f32_bf16 v{b}, v{f0+i}, v{f0+i}\n"
              f"v_dot2c_f32_bf16 v{c}, s{sONE}, v{f1+i}\nv_dot2c_f32_bf16 v{d}, v{f1+i}, v{f1+i}")
        k(f"v_permlane32_swap_b32 v{a}, v{b}\nv_permlane32_swap_b32 v{c}, v{d}\nv_add_f32 v{a}, v{a}, v{b}\nv_add_f32 v{c}, v{c}, v{d}\n"
          f"v_permlane16_swap_b32 v{a}, v{c}\nv_add_f32 v{a}, v{a}, v{c}")

    def unpack(self, dst, src, n):
        for i in range(n):
            self.k(f"v_lshlrev_b32 v{dst+2*i}, 16, v{src+i}\nv_and_b32 v{dst+2*i+1}, 0xffff0000, v{src+i}")

    def blk(self, dst, a, g):
        self.k(f"s_lshl2_add_u32 s{dst}, s{sK}, {a}\ns_lshl2_add_u32 s{dst}, s{dst}, {g}")

    def row0(self, dst, a, g, tmp):
        self.k(f"s_lshl2_add_u32 s{dst}, s{sK}, {a}\ns_and_b32 s{tmp}, {g}, 1\ns_lshl_b32 s{tmp}, s{tmp}, 5\ns_add_u32 s{dst}, s{dst}, s{tmp}\n"
               f"s_lshr_b32 s{tmp}, {g}, 1\ns_lshl_b32 s{tmp}, s{tmp}, 10\ns_add_u32 s{dst}, s{dst}, s{tmp}")

    def fd_dma(self):
        k = self.k
        k(f"s_lshr_b32 s{t0}, s{sW}, 1\ns_lshl1_add_u32 s{t0}, s{sLO}, s{t0}\ns_lshl_b32 s{t0}, s{t0}, 14\n"
          f"s_mul_i32 s{t1}, s{sW}, {16*RS}\ns_cmp_eq_u32 s{t0}, 0\ns_cselect_b32 s{t2}, {256*1024}, s{t0}")
        tok = None
        for m in range(16):
            if m:
                k(f"s_add_u32 s{t2}, s{t0}, {m*1024}")
            tok = k(f"s_add_u32 m0, s{t1}, {FD_L + m*RS}\nbuffer_load_dwordx4 v{vL16}, {S(sFD)}, s{t2} offen lds")
        return tok

    def dft32_consts(self):
        k = self.k
        k(f"s_lshr_b32 s{t0}, s{sW}, 1\ns_lshl_b32 s{t0}, s{t0}, 4\nv_add_u32 v{vT0}, s{t0}, v{vN}\nv_cvt_f32_u32 v{vT0}, v{vT0}\n"
          f"v_mul_f32 v{vT0}, {fl(1/32)}, v{vT0}\nv_lshlrev_b32 v{vT1}, 2, v{vQ}\nv_cvt_f32_u32 v{vT1}, v{vT1}\nv_mul_f32 v{vT1}, v{vT1}, v{vT0}")
        for jp in range(4):
            for h in range(2):
                j = 2*jp + h
                c = j if j < 4 else 12 + j
                k(f"v_fmamk_f32 v{56+h}, v{vT0}, {fl(float(c))}, v{vT1}\nv_fract_f32 v{56+h}, v{56+h}\n"
                  f"v_cos_f32 v{58+h}, v{56+h}\nv_sin_f32 v{60+h}, v{56+h}")
            k(f"v_cvt_pk_f16_f32 v{32+jp}, v58, v59\nv_cvt_pk_f16_f32 v{36+jp}, v60, v61\nv_xor_b32 v{40+jp}, 0x80008000, v{36+jp}")

    def prologue(self):
        k = self.k
        k(f"s_cmp_ge_u32 s2, 256\ns_cbranch_scc1 L_end")
        k(f"s_load_dwordx16 s[36:51], s[0:1], 0\ns_load_dwordx8 s[52:59], s[0:1], 64\ns_load_dwordx2 s[60:61], s[0:1], 96")
        k(f"s_getpc_b64 s[{sC}:{sC+1}]\nv_lshrrev_b32 v{vT0}, 6, v0\nv_and_b32 v{vLANE}, 63, v0\nv_readfirstlane_b32 s{sW}, v{vT0}")
        k(f"s_lshr_b32 s{t0}, s2, 3\ns_and_b32 s{t0}, s{t0}, 1\ns_lshl2_add_u32 s{t0}, s{t0}, s{sW}\ns_lshl_b32 s{t0}, s{t0}, 13\n"
          f"v_lshlrev_b32 v{vT1}, 7, v{vLANE}\nv_add_u32 v{vT1}, s{t0}, v{vT1}\nv_min_u32 v{vT1}, L_end-{NAME}_kernel-64, v{vT1}")
        k(f"global_load_dword v{vT2}, v{vT1}, s[{sC}:{sC+1}]")
        k(f"v_lshlrev_b32 v{vL16}, 4, v{vLANE}\nv_and_b32 v{vN}, 15, v{vLANE}\nv_lshrrev_b32 v{vQ}, 4, v{vLANE}")
        k(f"s_getreg_b32 s{sXCC}, hwreg(HW_REG_XCC_ID, 0, 3)\ns_and_b32 s{sSH}, s2, 7\ns_mov_b32 s{sK}, s{sSH}\n"
          f"s_lshr_b32 s{sHI}, s2, 6\ns_bfe_u32 s{sLO}, s2, 0x30003\ns_mov_b32 s{sIT}, 0\ns_mov_b32 s{sITB}, {IT0}\n"
          f"s_mov_b32 s{sGE}, 0\ns_mov_b32 s{sLE}, 0\ns_mov_b32 s{sSPIN}, 40000\ns_mov_b32 s{sERR}, 0\n"
          f"s_mul_i32 s{sW7}, s{sW}, 7168\ns_mov_b32 s{sONE}, 0x3f803f80")
        if self.diag:
            k(f"v_mov_b32 v{vDG}, 0")
        k("s_waitcnt lgkmcnt(0)")
        self.stamp("start")
        self.mk_srd(sWS, pWS, WS_SIZE)
        k(f"s_bitcmp1_b32 s{sW}, 0\ns_cselect_b32 s{sFD}, s{pHIM}, s{pHRE}\ns_cselect_b32 s{sFD+1}, s{pHIM+1}, s{pHRE+1}\n"
          f"s_mov_b32 s{sFD+2}, {KSIZE['hid_re']}\ns_mov_b32 s{sFD+3}, 0x20000")
        self.mk_srd(sRES, pX, KSIZE["x"])
        self.mk_srd(sDST, pWS, WS_SIZE)
        k(f"s_lshl_b32 s{t0}, s2, 7\ns_lshl_b32 s{t1}, s{sW}, 8\ns_add_u32 s{t1}, s{t1}, s2\ns_cmp_lt_u32 s{t1}, 64\ns_cselect_b32 s{t0}, s{t0}, {OOB}\nv_mov_b32 v{vT0}, 0\ns_mov_b64 exec, 1")
        tclr = k(f"buffer_store_dword v{vT0}, off, {S(sWS)}, s{t0} sc1")
        k("s_mov_b64 exec, -1")
        self.mk_srd(sA, pWIN, KSIZE["w_in"])
        self.mk_srd(sB, pWOUT, KSIZE["w_out"])
        k(f"s_min_u32 s{t6}, s2, 223\ns_mul_i32 s{t0}, s{t6}, 2341\ns_lshr_b32 s{t0}, s{t0}, 16\ns_mul_i32 s{t1}, s{t0}, 28\ns_sub_u32 s{t1}, s{t6}, s{t1}")
        k(f"s_mov_b32 s{sC+2}, s{t0}\ns_mov_b32 s{sC+3}, s{t1}")
        k(f"s_lshl2_add_u32 s{t2}, s{t0}, s{sW}\ns_mul_i32 s{t2}, s{t2}, {16*3584}\ns_lshl_b32 s{t3}, s{t1}, 7\ns_add_u32 s{t2}, s{t2}, s{t3}")
        k(f"v_lshrrev_b32 v{vT1}, 3, v{vLANE}\nv_and_b32 v{vT3}, 7, v{vLANE}\nv_lshlrev_b32 v{vT3}, 4, v{vT3}\n"
          f"v_mul_u32_u24 v{vA0}, 3584, v{vT1}\nv_add_u32 v{vA0}, v{vA0}, v{vT3}\nv_lshl_add_u32 v{vA1}, v{vT1}, 10, v{vT3}")
        k(f"s_mul_i32 s{t3}, s{sW}, {2*RS}\ns_add_u32 m0, s{t3}, {T_L}\nbuffer_load_dwordx4 v{vA0}, {S(sA)}, s{t2} offen lds")
        k(f"s_add_u32 s{t2}, s{t2}, {8*3584}\ns_add_u32 m0, s{t3}, {T_L+RS}\nbuffer_load_dwordx4 v{vA0}, {S(sA)}, s{t2} offen lds")
        k(f"s_lshr_b32 s{t0}, s{t6}, 3\ns_and_b32 s{t1}, s{t0}, 7\ns_lshr_b32 s{t2}, s{t0}, 3\ns_mul_i32 s{t3}, s{t1}, 112\ns_lshl_b32 s{t2}, s{t2}, 5\ns_add_u32 s{t3}, s{t3}, s{t2}\n"
          f"s_mul_i32 s{t4}, s{t1}, 224\ns_add_u32 s{t4}, s{t4}, 96\ns_cmp_lt_u32 s{t0}, 24\ns_cselect_b32 s{t3}, s{t3}, s{t4}\ns_cselect_b32 s{t4}, 16, 112\n"
          f"s_lshr_b32 s{t5}, s{sW}, 1\ns_mul_i32 s{t4}, s{t4}, s{t5}\ns_add_u32 s{t3}, s{t3}, s{t4}\ns_and_b32 s{t5}, s{sW}, 1\ns_lshl3_add_u32 s{t3}, s{t5}, s{t3}\n"
          f"s_lshl_b32 s{t3}, s{t3}, 10\ns_and_b32 s{t5}, s{t6}, 7\ns_lshl_b32 s{t5}, s{t5}, 7\ns_add_u32 s{t3}, s{t3}, s{t5}")
        tprep = k(f"s_mul_i32 s{t4}, s{sW}, {RS}\ns_add_u32 m0, s{t4}, {T_L+8*RS}\nbuffer_load_dwordx4 v{vA1}, {S(sB)}, s{t3} offen lds")
        self.row0(t0, f"s{sHI}", f"s{sW}", t1)
        k(f"s_lshl_b32 s{t0}, s{t0}, 10\ns_mul_i32 s{t1}, s{sW}, {16*RS}")
        for n in range(16):
            tx = k(f"s_add_u32 s{t2}, s{t0}, {n*65536}\ns_add_u32 m0, s{t1}, {XB_L + n*RS}\nbuffer_load_dwordx4 v{vL16}, {S(sRES)}, s{t2} offen lds")
        tfd = self.fd_dma()
        with self.if_w0():
            self.mk_srd(sA, pDBG, 256)
            k.wvm(tclr)
            k(f"s_lshl_b32 s{t0}, s{sXCC}, 5\nv_mov_b32 v{vA5}, 1\ns_mov_b64 exec, 1")
            k(f"buffer_atomic_add v{vA5}, off, {S(sA)}, s{t0} sc0 sc1\ns_mov_b64 exec, -1")
        self.dft32_consts()
        k.wvm(tprep)
        k("s_barrier")
        with self.cond("s_cmp_ge_u32 s2, 224"):
            k(f"v_lshrrev_b32 v{vT0}, 2, v{vN}\nv_and_b32 v{vT1}, 3, v{vN}\nv_lshlrev_b32 v{vT0}, 7, v{vT0}\n"
              f"v_mul_u32_u24 v{vA0}, {RS}, v{vQ}\nv_add_u32 v{vA0}, v{vA0}, v{vT0}\nv_lshl_add_u32 v{vA0}, v{vT1}, 3, v{vA0}\n"
              f"s_lshl_b32 s{t0}, s{sW}, 5\ns_add_u32 s{t0}, s{t0}, {T_L}\nv_add_u32 v{vA0}, s{t0}, v{vA0}")
            k(f"v_lshrrev_b32 v{vT2}, 1, v{vQ}\nv_mul_u32_u24 v{vA1}, {RS}, v{vT2}\nv_and_b32 v{vT2}, 1, v{vQ}\nv_lshl_add_u32 v{vA1}, v{vT2}, 9, v{vA1}\n"
              f"v_add_u32 v{vA1}, v{vA1}, v{vT0}\nv_lshl_add_u32 v{vA1}, v{vT1}, 4, v{vA1}\n"
              f"s_lshr_b32 s{t0}, s{sW}, 1\ns_lshl_b32 s{t0}, s{t0}, 6\ns_and_b32 s{t1}, s{sW}, 1\ns_lshl3_add_u32 s{t0}, s{t1}, s{t0}\n"
              f"s_add_u32 s{t0}, s{t0}, {T_L+8*RS}\nv_add_u32 v{vA1}, s{t0}, v{vA1}")
            for kp in range(2):
                for u in range(2):
                    k(f"ds_read_b64_tr_b16 {V(128+4*kp+2*u,2)}, v{vA0} offset:{4*kp*RS + 512*u}")
            for u in range(2):
                k(f"ds_read_b64_tr_b16 {V(136+2*u,2)}, v{vA1} offset:{2*u*RS}")
            k(f"s_lshl2_add_u32 s{t0}, s{sC+3}, s{sW}\ns_mul_i32 s{t1}, s{t0}, 9363\ns_lshr_b32 s{t1}, s{t1}, 16\ns_mul_i32 s{t2}, s{t1}, 7\ns_sub_u32 s{t2}, s{t0}, s{t2}\n"
              f"s_lshl3_add_u32 s{t1}, s{t1}, s{sC+2}\ns_mul_i32 s{t1}, s{t1}, {2*7168}\ns_lshl_b32 s{t2}, s{t2}, 10\ns_add_u32 s{t1}, s{t1}, s{t2}\ns_add_u32 s{t1}, s{t1}, {WIN}\n"
              f"s_add_u32 s{t2}, s{t1}, 7168")
            k(f"s_and_b32 s{t3}, s2, 7\ns_mul_i32 s{t3}, s{t3}, 28\ns_lshr_b32 s{t4}, s2, 3\ns_add_u32 s{t3}, s{t3}, s{t4}\ns_lshl2_add_u32 s{t3}, s{t3}, s{sW}\n"
              f"s_lshl_b32 s{t3}, s{t3}, 10\ns_add_u32 s{t3}, s{t3}, {WOUT}")
            k(f"s_mul_i32 s{t4}, s{sC+2}, 7168\ns_lshl_b32 s{t0}, s{t0}, 6\ns_add_u32 s{t4}, s{t4}, s{t0}\ns_add_u32 s{t4}, s{t4}, {CSP}")
            k(f"v_mov_b32 v{vT0}, 0\nv_mov_b32 v{vT1}, 0\nv_lshlrev_b32 v{vT2}, 2, v{vN}\ns_waitcnt lgkmcnt(0)")
            k(f"buffer_store_dwordx4 {V(128)}, v{vL16}, {S(sWS)}, s{t1} offen sc1\nbuffer_store_dwordx4 {V(132)}, v{vL16}, {S(sWS)}, s{t2} offen sc1\n"
              f"buffer_store_dwordx4 {V(136)}, v{vL16}, {S(sWS)}, s{t3} offen sc1")
            for i in range(8):
                k(f"v_dot2c_f32_bf16 v{vT0}, s{sONE}, v{128+i}")
            self.reduce_q_pair(vT0, vT1)
            k(f"s_mov_b64 exec, 0xffff\nbuffer_store_dword v{vT0}, v{vT2}, {S(sWS)}, s{t4} offen sc1\ns_mov_b64 exec, -1")
        self.stamp("prep")
        k(f"v_mul_u32_u24 v{vA0}, {RS}, v{vN}\nv_lshl_add_u32 v{vA0}, v{vQ}, 4, v{vA0}\ns_mul_i32 s{t1}, s{sW}, {16*RS}\n"
          f"s_add_u32 s{t1}, s{t1}, {XB_L}\nv_add_u32 v{vA1}, s{t1}, v{vA0}\nv_mov_b32 v54, 0\nv_mov_b32 v55, 0")
        k.wvm(tx)
        tk = [k(f"ds_read_b128 {V(64+4*s)}, v{vA1} offset:{64*s}") for s in range(16)]
        for s in range(16):
            k.wlg(tk[s])
            for i in range(4):
                k(f"v_dot2c_f32_bf16 v54, s{sONE}, v{64+4*s+i}\nv_dot2c_f32_bf16 v55, v{64+4*s+i}, v{64+4*s+i}")
        self.reduce_q_pair(54, 55)
        self.finish_stats(54, 55, 512, 52, 53)
        with self.if_w0():
            k(f"s_waitcnt vmcnt(0)\nv_mov_b32 v{vT0}, {MISC_L}")
            k(f"s_mov_b64 exec, 1\nds_write_b32 v{vT0}, v{vA5}\ns_mov_b64 exec, -1")
        k.wvm(tfd)
        k("s_waitcnt lgkmcnt(0)\ns_barrier")
        self.stamp("p0loaded")

    def p0(self):
        k = self.k
        lag = self.o["lagx"]
        k("L_iter:")
        k.fence()
        with self.if_it(1):
            self.blk(t0, f"s{sHI}", f"s{sW}")
            k(f"s_lshl_b32 s{t1}, s{t0}, 11\ns_add_u32 s{t1}, s{t1}, {ST2}\ns_lshl_b32 s{t0}, s{t0}, 14\ns_add_u32 s{t0}, s{t0}, {X2}")
            for s in range(16):
                if s % 4 == 0:
                    k(f"s_add_u32 s{t2}, s{t0}, {s*1024}")
                k(f"buffer_load_dwordx4 {V(64+4*s)}, v{vL16}, {S(sWS)}, s{t2} offen offset:{(s%4)*1024} sc1")
            k(f"buffer_load_dwordx4 {V(44)}, v{vL16}, {S(sWS)}, s{t1} offen sc1\nbuffer_load_dwordx4 {V(48)}, v{vL16}, {S(sWS)}, s{t1} offen offset:1024 sc1")
        k(f"v_mul_u32_u24 v{vA0}, {RS}, v{vN}\nv_lshl_add_u32 v{vA0}, v{vQ}, 4, v{vA0}")
        self.gemm(4, range(16), 16, lambda s: 64+4*s, lambda s, t: (vA0, FD_L + t*16*RS + 64*s), 128, 8,
                  hook=lambda s: k(f"s_waitcnt vmcnt({17-s})"), cinit=lambda t: "0")
        with self.if_it(1):
            k("s_waitcnt vmcnt(0)")
            self.stats_from_partials(44, 54, 55)
            self.finish_stats(54, 55, 512, 52, 53)
        self.stamp("p0gemm")
        k(f"s_lshl_b32 s{t0}, s{sW}, 4\nv_add_u32 v{vA1}, s{t0}, v{vN}\nv_mul_u32_u24 v{vA1}, {X_RS}, v{vA1}\nv_lshl_add_u32 v{vA1}, v{vQ}, 3, v{vA1}\nv_add_u32 v{vA1}, {T_L}, v{vA1}")
        k(f"v_lshrrev_b32 v{vT0}, 2, v{vLANE}\nv_mul_u32_u24 v{vA2}, {X_RS}, v{vT0}\nv_and_b32 v{vT0}, 3, v{vLANE}\nv_lshl_add_u32 v{vA2}, v{vT0}, 3, v{vA2}\n"
          f"s_and_b32 s{t0}, s{sW}, 1\ns_lshl_b32 s{t0}, s{t0}, 6\ns_add_u32 s{t0}, s{t0}, {T_L}\nv_add_u32 v{vA2}, s{t0}, v{vA2}")
        for t in range(4):
            for h in range(2):
                r = 16+4*t+2*h
                k(f"v_pk_mul_f32 {V(r,2)}, {V(r,2)}, {V(52,2)} op_sel_hi:[1,0]")
            k(f"v_cvt_pk_f16_f32 v{160+2*t}, v{16+4*t}, v{17+4*t}\nv_cvt_pk_f16_f32 v{161+2*t}, v{18+4*t}, v{19+4*t}")
            k(f"ds_write_b64 v{vA1}, {V(160+2*t,2)} offset:{32*t}")
        k("s_waitcnt lgkmcnt(0)\ns_barrier")
        tk = {}
        for pi in range(2):
            for c in range(2):
                for hh in range(2):
                    tk[pi, c] = k(f"ds_read_b64_tr_b16 {V(128+8*pi+4*c+2*hh,2)}, v{vA2} offset:{(2*hh+pi)*16*X_RS + 32*c}")
        k(f"s_lshr_b32 s{t0}, s{sW}, 1\ns_lshl_b32 s{t0}, s{t0}, 20\ns_lshl2_add_u32 s{t1}, s{sK}, s{sHI}\ns_lshl_b32 s{t1}, s{t1}, 12\ns_add_u32 s{t0}, s{t0}, s{t1}\n"
          f"s_and_b32 s{t1}, s{sW}, 1\ns_lshl1_add_u32 s{t1}, s{sLO}, s{t1}\ns_lshl_b32 s{t1}, s{t1}, 8\ns_add_u32 s{t0}, s{t0}, s{t1}\n"
          f"s_add_u32 s{t0}, s{t0}, s{sITB}\ns_add_u32 s{t1}, s{t0}, 0x20000\nv_lshlrev_b32 v{vA3}, 18, v{vQ}\nv_lshl_add_u32 v{vA3}, v{vN}, 4, v{vA3}")
        for pi in range(2):
            xr, xi, zr, zi = 128+8*pi, 132+8*pi, 144+8*pi, 148+8*pi
            k.wlg(tk[pi, 1])
            k(f"v_mfma_f32_16x16x32_f16 {V(zr)}, {V(32)}, {V(xr)}, 0\nv_mfma_f32_16x16x32_f16 {V(zi)}, {V(32)}, {V(xi)}, 0\n"
              f"v_mfma_f32_16x16x32_f16 {V(zr)}, {V(36)}, {V(xi)}, {V(zr)}\nv_mfma_f32_16x16x32_f16 {V(zi)}, {V(40)}, {V(xr)}, {V(zi)}")
        for pi in range(2):
            for i in range(4):
                k(f"v_cvt_pk_f16_f32 v{160+2*i+pi}, v{144+8*pi+i}, v{148+8*pi+i}")
        k(f"buffer_store_dwordx4 {V(160)}, v{vA3}, {S(sWS)}, s{t0} offen sc1\nbuffer_store_dwordx4 {V(164)}, v{vA3}, {S(sWS)}, s{t1} offen sc1")
        with self.if_it(0):
            k.note("switch to the run-time role, clear this role's local hand-off words")
            k(f"v_mov_b32 v{vT0}, {MISC_L}\nds_read_b32 v{vT0}, v{vT0}\ns_waitcnt lgkmcnt(0)\nv_readfirstlane_b32 s{t0}, v{vT0}\n"
              f"s_cmp_ge_u32 s{t0}, 32\ns_cbranch_scc1 L_end\ns_mov_b32 s{sK}, s{sXCC}\ns_lshr_b32 s{sHI}, s{t0}, 3\ns_and_b32 s{sLO}, s{t0}, 7")
            self.zs_addr(t1, vA4)
            k(f"v_mov_b32 v{vT0}, -1\ns_add_u32 s{t2}, s{t1}, {ITS}")
            k(f"buffer_store_dword v{vT0}, v{vA4}, {S(sWS)}, s{t1} offen\nbuffer_store_dword v{vT0}, v{vA4}, {S(sWS)}, s{t2} offen")
            with self.if_w0():
                self.lf_store("0")
                self.mk_srd(sA, pDBG, 256)
                k(f"v_and_b32 v{vT1}, 7, v{vLANE}\nv_lshlrev_b32 v{vT1}, 5, v{vT1}")
                self.poll(vT1, sA, "0", "32", 1)
        k("s_waitcnt vmcnt(0)")
        self.g_arrive()
        self.stamp("g1arr")

    def zs_addr(self, sdst, vdst):
        k = self.k
        self.blk(sdst, f"s{sHI}", f"s{sW}")
        k(f"s_lshl_b32 s{sdst}, s{sdst}, 10\ns_add_u32 s{sdst}, s{sdst}, s{sITB}\ns_add_u32 s{sdst}, s{sdst}, {ZS}\n"
          f"s_lshr_b32 s{t7}, s{sLO}, 1\ns_lshl_b32 s{t7}, s{t7}, 5\ns_and_b32 s{t6}, s{sLO}, 1\ns_add_u32 s{t7}, s{t7}, s{t6}\ns_lshl_b32 s{t7}, s{t7}, 3\n"
          f"v_lshrrev_b32 v{vdst}, 1, v{vQ}\nv_lshlrev_b32 v{vdst}, 2, v{vdst}\nv_lshl_add_u32 v{vdst}, v{vN}, 4, v{vdst}\nv_add_u32 v{vdst}, s{t7}, v{vdst}")

    def stage_wsp(self):
        k = self.k
        self.mk_srd(sA, pWSP, KSIZE["w_sp"])
        self.mk_srd(sB, pBSP, KSIZE["b_sp"])
        self.row0(t0, f"s{sW}", f"s{sHI}", t1)
        k(f"s_lshl_b32 s{t0}, s{t0}, 1\nv_lshlrev_b32 v{vT0}, 7, v{vN}\nbuffer_load_ushort v{vBIAS}, v{vT0}, {S(sB)}, s{t0} offen")
        k(f"s_mul_i32 s{t4}, s{sW}, {32*SP_RS}\nv_mul_u32_u24 v{vA0}, {SP_RS}, v{vN}\nv_lshl_add_u32 v{vA0}, v{vQ}, 8, v{vA0}\nv_add_u32 v{vA0}, s{t4}, v{vA0}")
        for rnd in range(2):
            toks = []
            for rr in range(2):
                r = 2*rnd + rr
                k(f"s_add_u32 s{t2}, s{sW}, {r}\ns_and_b32 s{t2}, s{t2}, 3")
                self.row0(t0, f"s{t2}", f"s{sHI}", t1)
                k(f"s_lshl2_add_u32 s{t0}, s{t0}, s{sW}\ns_lshl_b32 s{t0}, s{t0}, 10")
                for n in range(16):
                    tok = k(f"s_add_u32 s{t2}, s{t0}, {n*64*4096}\ns_add_u32 m0, s{t4}, {(16*rr+n)*SP_RS}\nbuffer_load_dwordx4 v{vL16}, {S(sA)}, s{t2} offen lds")
                toks.append(tok)
            if rnd == 0:
                self.p1_consts()
            for rr in range(2):
                r = 2*rnd + rr
                k.wvm(toks[rr])
                for st in range(16):
                    for u in range(2):
                        k(f"ds_read_b64 {A((st*4+r)*4+2*u,2)}, v{vA0} offset:{16*rr*SP_RS + 8*(st>>1) + 64*(st&1) + 128*u}")
            k("s_waitcnt lgkmcnt(0)")
        k(f"v_lshlrev_b32 v{vBIAS}, 16, v{vBIAS}")

    def p1_consts(self):
        k = self.k
        k(f"s_and_b32 s{t2}, s{sW}, 2")
        self.row0(t5, f"s{sHI}", f"s{t2}", t6)
        k(f"s_mov_b32 s{t6}, {fl(1/2048)}\ns_cmp_ge_u32 s{sLO}, 4\ns_cselect_b32 s{t6}, {fl(-1/2048)}, s{t6}\nv_lshlrev_b32 v{vT1}, 1, v{vQ}\nv_cvt_f32_u32 v{vT1}, v{vT1}")
        for pi in range(2):
            k(f"s_add_u32 s{t7}, s{t5}, {32*pi}\nv_lshl_add_u32 v{vT0}, v{vN}, 6, s{t7}\nv_cvt_f32_u32 v{vT0}, v{vT0}\nv_mul_f32 v{vT0}, s{t6}, v{vT0}\nv_mul_f32 v{vT2}, v{vT1}, v{vT0}")
            for kap in range(4):
                for j in range(4):
                    c = 8*kap + (j >> 1) + 32*(j & 1)
                    h = j & 1
                    k(f"v_fmamk_f32 v{56+h}, v{vT0}, {fl(float(c))}, v{vT2}\nv_fract_f32 v{56+h}, v{56+h}\n"
                      f"v_cos_f32 v{58+h}, v{56+h}\nv_sin_f32 v{60+h}, v{56+h}\nv_cvt_pk_f16_f32 v{64+16*pi+4*kap+j}, v{58+h}, v{60+h}")

    def win_base(self, dst, zz):
        self.k(f"s_mul_i32 s{dst}, s{sLO}, {4*CH}\ns_add_u32 s{dst}, s{dst}, s{sW7}\ns_add_u32 s{dst}, s{dst}, {WIN + zz*8*4*CH}")

    def win_first_loads(self):
        k = self.k
        self.win_base(t5, 1)
        for c in range(4):
            for op in self.dma_chunk_ops(t5, c*CH, c):
                k(op)
        self.win_base(t5, 0)
        for op in self.dma_chunk_ops(t5, 0, 4):
            k(op)

    def p1(self):
        k = self.k
        with self.if_it(0):
            self.stage_wsp()
        with self.if_it(1):
            self.win_first_loads()
            self.p1_consts()
        k(f"s_and_b32 s{t2}, s{sW}, 2\ns_and_b32 s{t3}, s{sW}, 1\ns_lshl1_add_u32 s{t3}, s{sLO}, s{t3}")
        self.blk(t4, f"s{sHI}", f"s{t2}")
        k(f"s_lshl4_add_u32 s{sC}, s{t4}, s{t3}\ns_lshl_b32 s{sC}, s{sC}, 10")
        self.row0(t0, f"s{sHI}", f"s{t2}", t1)
        k(f"s_lshl4_add_u32 s{t0}, s{t0}, s{t3}\ns_lshl_b32 s{t0}, s{t0}, 6\ns_add_u32 s{t1}, s{sC}, {X2}\ns_cmp_eq_u32 s{sIT}, 0\n"
          f"s_cselect_b32 s{t0}, s{t0}, s{t1}\ns_cselect_b32 s{t1}, 2, 1\ns_lshl_b32 s{t1}, s{t1}, 14\ns_add_u32 s{t1}, s{t1}, s{t0}\n"
          f"s_cmp_eq_u32 s{sIT}, 0\ns_cselect_b32 s{t5}, 16, 4\ns_cselect_b32 s{t6}, 4, 8\n"
          f"v_lshlrev_b32 v{vA4}, s{t5}, v{vN}\nv_lshlrev_b32 v{vT0}, s{t6}, v{vQ}\nv_add_u32 v{vA4}, v{vA4}, v{vT0}")
        k(f"buffer_load_dwordx4 {V(44)}, v{vA4}, {S(sRES)}, s{t0} offen sc1")
        tres = k(f"buffer_load_dwordx4 {V(48)}, v{vA4}, {S(sRES)}, s{t1} offen sc1")
        k(f"s_lshl_b32 s{sC+1}, s{t4}, 11\ns_lshr_b32 s{t5}, s{t3}, 1\ns_lshl_b32 s{t5}, s{t5}, 5\ns_and_b32 s{t6}, s{t3}, 1\ns_add_u32 s{t5}, s{t5}, s{t6}\n"
          f"s_lshl3_add_u32 s{sC+1}, s{t5}, s{sC+1}\ns_add_u32 s{sC+1}, s{sC+1}, s{sITB}\ns_add_u32 s{sC+1}, s{sC+1}, {ST1}\n"
          f"s_add_u32 s{sC}, s{sC}, s{sITB}\ns_add_u32 s{sC}, s{sC}, {X1}")
        k(f"v_and_b32 v{vT0}, 1, v{vQ}\nv_lshlrev_b32 v{vA5}, 11, v{vT0}\nv_lshl_add_u32 v{vA5}, v{vN}, 4, v{vA5}\nv_lshrrev_b32 v{vT0}, 1, v{vQ}\nv_lshl_add_u32 v{vA5}, v{vT0}, 2, v{vA5}")
        k(f"s_lshl2_add_u32 s{t0}, s{sK}, s{sHI}\ns_sub_u32 s{t1}, 32, s{t0}\ns_and_b32 s{t1}, s{t1}, 31\ns_cmp_ge_u32 s{sLO}, 4\ns_cselect_b32 s{t0}, s{t1}, s{t0}\n"
          f"s_cselect_b32 s{t5}, -1, 1\ns_lshr_b32 s{t1}, s{t0}, 1\ns_lshl_b32 s{t1}, s{t1}, 17\ns_and_b32 s{t0}, s{t0}, 1\ns_lshl3_add_u32 s{sC+2}, s{t0}, s{t1}\n"
          f"s_add_u32 s{sC+2}, s{sC+2}, s{sITB}")
        k(f"s_lshl_b32 s{t3}, s{t3}, 5\nv_lshrrev_b32 v{vT0}, 2, v{vN}\nv_and_b32 v{vT1}, 3, v{vN}\nv_lshl_add_u32 v{vT0}, v{vT0}, 3, v{vT1}\nv_add_u32 v{vT0}, s{t3}, v{vT0}\n"
          f"v_lshlrev_b32 v{vT2}, 13, v{vQ}\nv_mov_b32 v{vT3}, {OOB}")
        for b in range(2):
            d = vA2 + b
            k(f"v_add_u32 v{vT1}, {4*b}, v{vT0}\nv_mul_i32_i24 v{d}, s{t5}, v{vT1}\nv_and_b32 v{d}, 255, v{d}\nv_lshl_add_u32 v{d}, v{d}, 4, v{vT2}")
            if b == 0:
                k(f"v_cmp_eq_u32 vcc, 0, v{vT1}\nv_cndmask_b32 v{d}, v{d}, v{vT3}, vcc")
        k.wvm(tres)
        for pi in range(2):
            self.unpack(16+8*pi, 44+4*pi, 4)
        self.stamp("g1shadow")
        self.g_wait(2)
        self.stamp("g1done")
        tk = {}
        for kap in range(4):
            for u in range(2):
                k(f"s_add_u32 s{t0}, s{sC+2}, {kap*32768 + u*4096}")
                for b in range(2):
                    tk[kap] = k(f"buffer_load_dwordx2 {V(96+16*b+4*kap+2*u,2)}, v{vA2+b}, {S(sWS)}, s{t0} offen sc1")
        for kap in range(4):
            k.wvm(tk[kap])
            for pi in range(2):
                for b in range(2):
                    a = V(16+8*pi+4*b)
                    k(f"v_mfma_f32_16x16x32_f16 {a}, {V(96+16*b+4*kap)}, {V(64+16*pi+4*kap)}, {a}")
        k(f"s_add_u32 s{t0}, s{sC}, 0x4000")
        for pi in range(2):
            for i in range(4):
                k(f"v_cvt_pk_bf16_f32 v{32+4*pi+i}, v{16+8*pi+2*i}, v{17+8*pi+2*i}")
            k(f"buffer_store_dwordx4 {V(32+4*pi)}, v{vL16}, {S(sWS)}, s{sC if pi == 0 else t0} offen")
        self.frag_stats(32, 36)
        k(f"buffer_store_dword v{vT0}, v{vA5}, {S(sWS)}, s{sC+1} offen\ns_waitcnt vmcnt(0)")
        self.l_arrive()
        self.stamp("l1arr")

    def gelu_pair(self, z, tt, r, a, b):
        k = self.k
        k(f"v_pk_fma_f32 {V(z,2)}, {V(z,2)}, {V(r,2)}, {V(tt,2)} op_sel_hi:[1,0,1]\n"
          f"v_pk_mul_f32 {V(a,2)}, {V(z,2)}, {V(z,2)}\n"
          f"v_pk_fma_f32 {V(a,2)}, {V(a,2)}, {V(b,2)}, {V(b,2)} op_sel:[0,0,1] op_sel_hi:[1,0,1]\n"
          f"v_pk_mul_f32 {V(a,2)}, {V(a,2)}, {V(z,2)}\n"
          f"v_exp_f32 v{a}, v{a}\nv_exp_f32 v{a+1}, v{a+1}")

    def gelu_pair2(self, z, a):
        self.k(f"v_pk_add_f32 {V(a,2)}, {V(a,2)}, 1.0 op_sel_hi:[1,0]\nv_rcp_f32 v{a}, v{a}\nv_rcp_f32 v{a+1}, v{a+1}")

    def gelu(self, acc, stats, extra):
        k = self.k
        tmp = [240, 242, 244]
        extra = list(extra)
        for p in range(16):
            if p < 14:
                self.gelu_pair(acc+2*p, 212+2*p, 52, tmp[p % 3], 56)
            if 1 <= p < 15:
                self.gelu_pair2(acc+2*(p-1), tmp[(p-1) % 3])
            if p >= 2:
                z = acc+2*(p-2)
                k(f"v_pk_mul_f32 {V(z,2)}, {V(z,2)}, {V(tmp[(p-2) % 3],2)}")
                if stats:
                    if p == 2:
                        k(f"v_pk_mul_f32 {V(60,2)}, {V(z,2)}, {V(z,2)}\nv_mov_b32 v58, v{z}\nv_mov_b32 v59, v{z+1}")
                    else:
                        k(f"v_pk_fma_f32 {V(60,2)}, {V(z,2)}, {V(z,2)}, {V(60,2)}\nv_pk_add_f32 {V(58,2)}, {V(58,2)}, {V(z,2)}")
            if extra:
                k(extra.pop(0))
        for op in extra:
            k(op)

    def cs_terms(self, zz):
        k = self.k
        k(f"v_lshlrev_b32 v{vT0}, 4, v{vQ}\nv_add_u32 v{vT0}, {CS_L + zz*448}, v{vT0}")
        for t in range(7):
            k(f"ds_read_b128 {V(212+4*t)}, v{vT0} offset:{64*t}")
        k("s_waitcnt lgkmcnt(0)")
        for p in range(14):
            k(f"v_pk_mul_f32 {V(212+2*p,2)}, {V(212+2*p,2)}, {V(52,2)} op_sel:[0,1] op_sel_hi:[1,1]")

    def p2(self):
        k = self.k
        lag = self.o["lagx"]
        with self.if_it(0):
            self.win_first_loads()
            k(f"s_lshl_b32 s{t0}, s{sW}, 6\nv_add_u32 v{vT0}, s{t0}, v{vLANE}\nv_min_u32 v{vT0}, 223, v{vT0}\nv_cmp_le_u32 vcc, 112, v{vT0}\nv_mov_b32 v{vT1}, {896-112}\n"
              f"v_cndmask_b32 v{vT1}, 0, v{vT1}, vcc\nv_add_lshl_u32 v{vT1}, v{vT1}, v{vT0}, 2\ns_mul_i32 s{t0}, s{sLO}, 448\ns_add_u32 s{t0}, s{t0}, {CSP}")
            for j in range(8):
                k(f"s_add_u32 s{t1}, s{t0}, {j*7168}\nbuffer_load_dword v{16+j}, v{vT1}, {S(sWS)}, s{t1} offen sc1")
            k(f"v_lshlrev_b32 v{vT0}, 2, v{vT0}\nv_add_u32 v{vT0}, {CS_L}, v{vT0}\ns_waitcnt vmcnt(0)")
            for j in range(1, 8):
                k(f"v_add_f32 v16, v16, v{16+j}")
            k(f"ds_write_b32 v{vT0}, v16")
        self.chunk_addr_regs()
        c1 = -2*0.7978845608028654*1.4426950408889634
        k(f"v_mov_b32 v56, {fl(0.044715*c1)}\nv_mov_b32 v57, {fl(c1)}")
        self.blk(t0, f"s{sW}", f"s{sHI}")
        k(f"s_lshl_b32 s{t1}, s{t0}, 11\ns_add_u32 s{t1}, s{t1}, s{sITB}\ns_add_u32 s{sC+1}, s{t1}, {ST1}\n"
          f"s_lshl_b32 s{t0}, s{t0}, 14\ns_add_u32 s{t0}, s{t0}, s{sITB}\ns_add_u32 s{sC}, s{t0}, {X1}")
        self.zs_addr(sC+2, vA4)
        k("s_waitcnt vmcnt(0) lgkmcnt(0)")
        self.l_wait(3)
        self.stamp("l1done")
        tk = {}

        def ld(s):
            if s < 16:
                if s % 4 == 0:
                    k(f"s_add_u32 s{t2}, s{sC}, {s*1024}")
                tk[s] = k(f"buffer_load_dwordx4 {V(64+4*s)}, v{vL16}, {S(sWS)}, s{t2} offen offset:{(s%4)*1024} sc1")
            elif s < 18:
                tk[s] = k(f"buffer_load_dwordx4 {V(44+4*(s-16))}, v{vL16}, {S(sWS)}, s{sC+1} offen offset:{(s-16)*1024} sc1")
        for s in range(lag):
            ld(s)

        def hook(s):
            ld(s + lag)
            k.wvm(tk[s])
        self.gemm(7, range(16), 16, lambda s: 64+4*s, lambda s, t: self.chunk_addr(s//4, ((s % 4)*7+t)*1024), 128, 14, hook=hook, cinit=lambda t: "0")
        k("s_barrier")
        self.stamp("z2gemm")
        k.wvm(tk[17])
        self.stats_from_partials(44, 54, 55)
        self.finish_stats(54, 55, 512, 52, 53)
        self.cs_terms(1)
        self.win_base(t5, 0)
        dm = sum((self.dma_chunk_ops(t5, c*CH, c-1) for c in range(1, 4)), [])
        self.gelu(16, True, dm[:12])
        k(f"v_add_f32 v58, v58, v59\nv_add_f32 v60, v60, v61\nv_permlane32_swap_b32 v58, v60\nv_add_f32 v58, v58, v60\nv_mov_b32 v60, v58\n"
          f"v_permlane16_swap_b32 v58, v60\nv_add_f32 v58, v58, v60")
        k(f"buffer_store_dword v58, v{vA4}, {S(sWS)}, s{sC+2} offen")
        self.stamp("z2gelu")
        k(f"s_mul_i32 s{t0}, s{sW}, {T_AS}\ns_add_u32 s{t0}, s{t0}, {T_L}\nv_mul_u32_u24 v{vA2}, {T_RS}, v{vN}\nv_lshl_add_u32 v{vA2}, v{vQ}, 3, v{vA2}\nv_add_u32 v{vA2}, s{t0}, v{vA2}")
        k(f"s_and_b32 s{t0}, s{sW}, 1\ns_mul_i32 s{t0}, s{t0}, {8*T_RS}\ns_lshr_b32 s{t1}, s{sW}, 1\ns_lshl_b32 s{t2}, s{t1}, 7\ns_add_u32 s{t0}, s{t0}, s{t2}\ns_add_u32 s{t0}, s{t0}, {T_L}\n"
          f"v_lshrrev_b32 v{vT0}, 2, v{vN}\nv_mul_u32_u24 v{vA3}, {T_AS}, v{vT0}\nv_and_b32 v{vT0}, 3, v{vN}\nv_lshl_add_u32 v{vA3}, v{vT0}, 3, v{vA3}\n"
          f"v_mul_u32_u24 v{vT0}, {2*T_RS}, v{vQ}\nv_add3_u32 v{vA3}, v{vA3}, v{vT0}, s{t0}")
        k(f"s_and_b32 s{t0}, s{sHI}, 2\ns_lshl2_add_u32 s{t0}, s{sLO}, s{t0}\ns_and_b32 s{t2}, s{sW}, 1\ns_add_u32 s{t0}, s{t0}, s{t2}\ns_mul_i32 s{t0}, s{t0}, 7\n"
          f"s_lshl2_add_u32 s{t0}, s{t1}, s{t0}\ns_lshl3_add_u32 s{t0}, s{t0}, s{sK}\ns_and_b32 s{t2}, s{sHI}, 1\ns_lshl1_add_u32 s{t0}, s{t0}, s{t2}\n"
          f"s_lshl_b32 s{t0}, s{t0}, 10\ns_add_u32 s{t0}, s{t0}, s{sITB}\ns_add_u32 s{sC+3}, s{t0}, {Z2N}")
        lp, done = k.lab("zs"), k.lab("zsok")
        with k.optional():
            k(f"s_mov_b32 s{sCNT}, s{sSPIN}\n{lp}:\nbuffer_load_dwordx4 {V(44)}, v{vL16}, {S(sWS)}, s{sC+2} offen sc1\ns_waitcnt vmcnt(0)\n"
              f"v_max3_u32 v{vT0}, v44, v45, v46\nv_max_u32 v{vT0}, v{vT0}, v47\nv_cmp_eq_u32 vcc, -1, v{vT0}\ns_cbranch_vccz {done}\n"
              f"s_sub_u32 s{sCNT}, s{sCNT}, 1\ns_cbranch_scc0 {lp}\ns_mov_b32 s{sSPIN}, 0\ns_mov_b32 s{sERR}, 4\n{done}:")
        self.stamp("zsdone")
        k(f"v_add_f32 v58, v44, v46\nv_add_f32 v59, v45, v47")
        self.reduce_q_pair(58, 59)
        self.finish_stats(58, 59, 896, 60, 61)
        for t in range(7):
            for h in range(2):
                z = 16+4*t+2*h
                k(f"v_pk_fma_f32 {V(z,2)}, {V(z,2)}, {V(60,2)}, {V(60,2)} op_sel:[0,0,1] op_sel_hi:[1,0,1]")
            k(f"v_cvt_pk_bf16_f32 v{16+4*t}, v{16+4*t}, v{17+4*t}\nv_cvt_pk_bf16_f32 v{17+4*t}, v{18+4*t}, v{19+4*t}\nds_write_b64 v{vA2}, {V(16+4*t,2)} offset:{32*t}")
        k("s_waitcnt lgkmcnt(0)\ns_barrier")
        tr = []
        for i in range(4):
            for u in range(2):
                tok = k(f"ds_read_b64_tr_b16 {V(16+4*i+2*u,2)}, v{vA3} offset:{32*i + T_RS*u}")
            tr.append(tok)
        for i in range(3):
            k(f"s_add_u32 s{t0}, s{sC+3}, {i*16384}")
            k.wlg(tr[i])
            k(f"buffer_store_dwordx4 {V(16+4*i)}, v{vL16}, {S(sWS)}, s{t0} offen sc1")
        k(f"s_add_u32 s{t0}, s{sC+3}, {3*16384}\ns_cmp_ge_u32 s{sW}, 2\ns_cselect_b32 s{t0}, {OOB}, s{t0}\ns_waitcnt lgkmcnt(0)")
        tst = k(f"buffer_store_dwordx4 {V(28)}, v{vL16}, {S(sWS)}, s{t0} offen sc1")
        k(f"s_add_u32 s{t7}, s{t5}, {2*CH + 4096:#x}\ns_add_u32 m0, s{sW7}, {CH + 4096:#x}")
        for op in dm[12:]:
            k(op)
        k("s_waitcnt vmcnt(0)")
        self.g_arrive()
        self.stamp("g2arr")
        k(f"s_mul_i32 s{t5}, s{sLO}, {4*CH}\ns_add_u32 s{t5}, s{t5}, s{sW7}\ns_add_u32 s{t5}, s{t5}, {WOUT}")
        wo = [self.dma_chunk_ops(t5, c*CH, (3, 4, 0, 1)[c]) for c in range(4)]
        first = list(wo[0])
        self.gemm(7, range(16), 184, lambda s: 64+4*s, lambda s, t: self.chunk_addr((4, 0, 1, 2)[s//4], ((s % 4)*7+t)*1024), 128, 14,
                  hook=lambda s: (k(first.pop(0)) if first and s % 2 else None), cinit=lambda t: "0")
        k("s_barrier")
        self.stamp("z1gemm")
        self.cs_terms(0)
        self.gelu(184, False, wo[1] + wo[2] + wo[3])

    def p3(self):
        k = self.k
        lag = self.o["lag3"]
        NR = 16
        RED = 2*CH
        for i in range(4):
            k(f"v_mov_b32 v{180+i}, v{vBIAS}")
        for r in range(1, 4):
            k(f"s_add_u32 s{t0}, s{sW}, {r}\ns_and_b32 s{t0}, s{t0}, 3\ns_mul_i32 s{t0}, s{t0}, 3072\ns_add_u32 s{t0}, s{t0}, {RED + (r-1)*1024}\nv_add_u32 v{vA1+r}, s{t0}, v{vL16}")
        k(f"s_mul_i32 s{t0}, s{sW}, 3072\ns_add_u32 s{t0}, s{t0}, {RED}\nv_add_u32 v{vA5}, s{t0}, v{vL16}\nv_lshlrev_b32 v11, 3, v{vLANE}")
        k(f"s_lshl2_add_u32 s{t0}, s{sLO}, s{sW}\ns_mul_i32 s{t0}, s{t0}, {112*1024}\ns_add_u32 s{t0}, s{t0}, s{sITB}\ns_add_u32 s{sC}, s{t0}, {Z2N}")
        self.blk(t0, f"s{sW}", f"s{sHI}")
        k(f"s_mul_i32 s{t0}, s{t0}, {CH}\ns_add_u32 s{t0}, s{t0}, s{sITB}\ns_add_u32 s{sC+4}, s{t0}, {U}\n"
          f"s_lshl_b32 s{t1}, s{sLO}, 10\ns_add_u32 s{sC+1}, s{sC+4}, s{t1}\ns_lshl_b32 s{t1}, s{sLO}, 9\ns_add_u32 s{sC+2}, s{sC+4}, s{t1}\ns_add_u32 s{sC+2}, s{sC+2}, 24576")
        self.stamp("g2shadow")
        self.g_wait(5)
        self.stamp("g2done")
        tk = {}

        def ld(i):
            if i < 112:
                if i % 4 == 0:
                    k(f"s_add_u32 s{t2}, s{sC}, {i*1024}")
                tk[i] = k(f"buffer_load_dwordx4 {V(64+4*(i % NR))}, v{vL16}, {S(sWS)}, s{t2} offen offset:{(i%4)*1024} sc1")

        def accr(t, r): return 16+4*t if r == 0 else 144 + 12*(t & 1) + 4*(r-1)
        def wr(t, r): return f"ds_write_b128 v{vA1+r}, {V(accr(t, r))} offset:{12288*(t&1)}"
        def rdp(t, j): return f"ds_read_b128 {V(168+4*j)}, v{vA5} offset:{12288*(t&1) + 1024*j}"

        def fin(t):
            ops = []
            for i in range(4):
                ops.append(f"v_add_f32 v{168+i}, v{168+i}, v{172+i}")
                ops.append(f"v_add_f32 v{16+4*t+i}, v{16+4*t+i}, v{176+i}")
            for i in range(4):
                ops.append(f"v_add_f32 v{168+i}, v{168+i}, v{16+4*t+i}")
            for i in range(4):
                ops.append(f"v_mul_f32 v{168+i}, v{168+i}, v{184+4*t+i}")
            o = 212 + 4*((t >> 1) & 1) + 2*(t & 1)
            ops.append(f"v_cvt_pk_bf16_f32 v{o}, v168, v169")
            ops.append(f"v_cvt_pk_bf16_f32 v{o+1}, v170, v171")
            if t == 6:
                ops.append(f"buffer_store_dwordx2 {V(o,2)}, v11, {S(sWS)}, s{sC+2} offen")
            elif t & 1:
                ops.append(f"s_add_u32 s{t3}, s{sC+1}, {(t>>1)*8192}\nbuffer_store_dwordx4 {V(o-2)}, v{vL16}, {S(sWS)}, s{t3} offen")
            return ops
        for i in range(lag):
            ld(i)
        for t in range(7):
            side = {}
            if t >= 1:
                for r in range(1, 4):
                    side.setdefault((r, 1), []).append(wr(t-1, r))
            if t >= 2:
                for j in range(3):
                    side.setdefault((4+j, 1), []).append(rdp(t-2, j))
                side.setdefault((8, 0), []).append("s_waitcnt lgkmcnt(0)")
                for j, op in enumerate(fin(t-2)):
                    side.setdefault((8 + j//3, 1 + j % 3), []).append(op)
            for st in range(16):
                i = 16*t + st
                ld(i + lag)
                k.wvm(tk[i])
                for r in range(4):
                    c = V(accr(t, r)) if st else (V(180) if r == 0 else "0")
                    k(f"v_mfma_f32_16x16x32_bf16 {V(accr(t, r))}, {V(64+4*(i % NR))}, {A((st*4+r)*4)}, {c}")
                    for op in side.get((st, r), []):
                        k(op)
            if t >= 1:
                k("s_waitcnt lgkmcnt(0)\ns_barrier")
        self.stamp("p3loop")
        for j in range(3):
            k(rdp(5, j))
        for r in range(1, 4):
            k(wr(6, r))
        k("s_waitcnt lgkmcnt(3)")
        for op in fin(5):
            k(op)
        k("s_waitcnt lgkmcnt(0)\ns_barrier")
        for j in range(3):
            k(rdp(6, j))
        k("s_waitcnt lgkmcnt(0)")
        for op in fin(6):
            k(op)
        k("s_waitcnt vmcnt(0)")
        self.l_arrive()
        self.stamp("l2arr")

    def p4(self):
        k = self.k
        lag = self.o["lagx"]
        self.blk(t4, f"s{sW}", f"s{sHI}")
        k(f"s_lshl3_add_u32 s{t0}, s{t4}, s{sLO}\ns_lshl_b32 s{sC}, s{t0}, 11\ns_add_u32 s{t0}, s{sC}, s{sITB}\ns_add_u32 s{t0}, s{t0}, {X1}")
        k(f"buffer_load_dwordx4 {V(44)}, v{vL16}, {S(sWS)}, s{t0} offen sc1")
        tres = k(f"buffer_load_dwordx4 {V(48)}, v{vL16}, {S(sWS)}, s{t0} offen offset:1024 sc1")
        self.chunk_addr_regs()
        k(f"s_lshl_b32 s{sC+1}, s{t4}, 11\ns_lshl_b32 s{t5}, s{sLO}, 8\ns_add_u32 s{sC+1}, s{sC+1}, s{t5}\ns_add_u32 s{sC+1}, s{sC+1}, {ST2}")
        k(f"v_and_b32 v{vT0}, 1, v{vQ}\nv_lshlrev_b32 v{vA5}, 3, v{vT0}\nv_lshl_add_u32 v{vA5}, v{vN}, 4, v{vA5}\nv_lshrrev_b32 v{vT0}, 1, v{vQ}\nv_lshl_add_u32 v{vA5}, v{vT0}, 2, v{vA5}")
        self.row0(t0, f"s{sW}", f"s{sHI}", t1)
        k(f"s_lshl3_add_u32 s{t0}, s{t0}, s{sLO}\ns_lshl_b32 s{t0}, s{t0}, 7\ns_add_u32 s{t1}, s{sC}, {X2}\ns_cmp_eq_u32 s{sIT}, 1\n"
          f"s_cselect_b32 s{sC}, s{t0}, s{t1}\ns_cselect_b32 s{t1}, 64, 1024\ns_cselect_b32 s{t5}, 16, 4\ns_cselect_b32 s{t6}, 4, 8\ns_add_u32 s{sC+2}, s{sC}, s{t1}\n"
          f"v_lshlrev_b32 v{vA4}, s{t5}, v{vN}\nv_lshlrev_b32 v{vT0}, s{t6}, v{vQ}\nv_add_u32 v{vA4}, v{vA4}, v{vT0}")
        k.wvm(tres)
        self.unpack(16, 44, 8)
        self.l_wait(6)
        self.stamp("l2done")
        tk = {}

        def ld(s):
            if s < 24:
                if s % 4 == 0:
                    k(f"s_add_u32 s{t2}, s{sC+4}, {s*1024}")
                tk[s] = k(f"buffer_load_dwordx4 {V(64+4*s)}, v{vL16}, {S(sWS)}, s{t2} offen offset:{(s%4)*1024} sc1")
            elif s < 28:
                if s == 24:
                    k(f"s_add_u32 s{t2}, s{sC+4}, 24576")
                for h in range(2):
                    tk[s] = k(f"buffer_load_dwordx2 {V(64+4*s+2*h,2)}, v11, {S(sWS)}, s{t2} offen offset:{(s-24)*1024 + 512*h} sc1")
        for s in range(lag):
            ld(s)

        def hook(s):
            ld(s + lag)
            k.wvm(tk[s])
        self.gemm(4, range(28), 16, lambda s: 64+4*s, lambda s, t: self.chunk_addr((3, 4, 0, 1)[s//7], ((s % 7)*4+t)*1024), 176, 8, hook=hook)
        self.stamp("p4gemm")
        for j2 in range(2):
            for i in range(4):
                k(f"v_cvt_pk_bf16_f32 v{32+4*j2+i}, v{16+8*j2+2*i}, v{17+8*j2+2*i}")
            k(f"buffer_store_dwordx4 {V(32+4*j2)}, v{vA4}, {S(sDST)}, s{sC+2*j2} offen")
        k(f"s_cmp_eq_u32 s{sIT}, 1\ns_cbranch_scc1 L_fin")
        self.frag_stats(32, 36)
        k(f"buffer_store_dword v{vT0}, v{vA5}, {S(sWS)}, s{sC+1} offen\ns_waitcnt vmcnt(0)")
        self.l_arrive()
        self.stamp("l3arr")
        self.fd_dma()
        self.dft32_consts()
        k(f"s_mov_b32 s{sIT}, 1\ns_add_u32 s{sITB}, s{sITB}, {ITS}")
        self.mk_srd(sRES, pWS, WS_SIZE)
        self.mk_srd(sDST, pOUT, KSIZE["out"])
        k("s_waitcnt vmcnt(0)")
        self.l_wait(7)
        k("s_branch L_iter")

    def epilogue(self):
        k = self.k
        k("L_fin:")
        k.fence()
        if self.diag:
            k("s_waitcnt vmcnt(0)")
            self.stamp("end")
            k(f"s_lshl2_add_u32 s{t0}, s2, s{sW}\ns_lshl_b32 s{t0}, s{t0}, 8\ns_add_u32 s{t0}, s{t0}, {DIAG}\nv_lshlrev_b32 v{vT0}, 2, v{vLANE}\n"
              f"s_lshl_b32 s{t1}, s{sK}, 5\ns_lshl3_add_u32 s{t1}, s{sHI}, s{t1}\ns_add_u32 s{t1}, s{t1}, s{sLO}\nv_writelane_b32 v{vDG}, s{t1}, 63\n"
              f"buffer_store_dword v{vDG}, v{vT0}, {S(sWS)}, s{t0} offen")
        with self.cond(f"s_cmp_eq_u32 s{sERR}, 0"):
            self.mk_srd(sA, pDBG, 256)
            k(f"v_mov_b32 v{vT0}, s{sERR}\ns_mov_b64 exec, 1\nbuffer_store_dword v{vT0}, off, {S(sA)}, 0 offset:4")
        k("L_end:\ns_endpgm")

    def build(self):
        self.prologue()
        self.p0()
        self.p1()
        self.p2()
        self.p3()
        self.p4()
        self.epilogue()
        k = self.k
        out = f"; @launch grid=({k.grid},1,1) block=({k.block},1,1) lds={k.lds}\n"
        out += '.amdgcn_target "amdgcn-amd-amdhsa--gfx950"\n.text\n' + k.text() + '.section .rodata,"a"\n' + k.desc()
        return out


if __name__ == "__main__":
    g = Gen(diag=False)
    open("v1.s", "w").write(g.build())
    g = Gen(diag=True)
    open("v1d.s", "w").write(g.build())
    open("v1d.names", "w").write("\n".join(g.names))
```
